```python
import torch

def _softmax(x, axis=-1):
    return torch.softmax(x, dim=axis)
def _gelu(x):
    return torch.nn.functional.gelu(x, approximate="tanh")
def _silu(x):
    return torch.nn.functional.silu(x)
def _sigmoid(x):
    return torch.sigmoid(x)
def _layernorm(x, axis=-1, eps=1e-5):
    m = x.mean(dim=axis, keepdim=True)
    v = x.var(dim=axis, keepdim=True, unbiased=False)
    return (x - m) / torch.sqrt(v + eps)
def _scatter_add(tgt, idx, src, axis=0):
    return tgt.clone().index_add_(axis, idx, src)
def _segment_sum(src, seg, n):
    out = torch.zeros((n,) + src.shape[1:], dtype=src.dtype)
    return out.index_add_(0, seg, src)
def _pad(x, pw):
    flat = tuple(v for pair in reversed(pw) for v in pair)
    return torch.nn.functional.pad(x, flat)

kernel_name = 'sequential_preLN__grouped_kv_mqa__swiglu_ffn__prompt'

def setup_inputs():

    _w = (lambda a: (lambda t: t.to(torch.bfloat16) if t.is_floating_point() else t)(torch.as_tensor(a)))
    def _A_setup():
        B, S, D, H = 1, 2048, 512, 32
        Dh = D // H
        return {
            "x": _w((lambda *s: torch.randn(*s, dtype=torch.bfloat16) * 0.05)(B, S, D)),
            "wq": _w((lambda *s: torch.randn(*s, dtype=torch.bfloat16) * 0.05)(D, H * Dh)),
            "wk": _w((lambda *s: torch.randn(*s, dtype=torch.bfloat16) * 0.05)(D, Dh)),
            "wv": _w((lambda *s: torch.randn(*s, dtype=torch.bfloat16) * 0.05)(D, Dh)),
            "wo": _w((lambda *s: torch.randn(*s, dtype=torch.bfloat16) * 0.05)(H * Dh, D)),
        }
    _A_in = _A_setup()

    def _B_setup():
        B, S, D, F = 1, 2048, 512, 1376
        return {
            "x": _w((lambda *s: torch.randn(*s, dtype=torch.bfloat16) * 0.05)(B, S, D)),
            "w_gate": _w((lambda *s: torch.randn(*s, dtype=torch.bfloat16) * 0.05)(D, F)),
            "w_up": _w((lambda *s: torch.randn(*s, dtype=torch.bfloat16) * 0.05)(D, F)),
            "w_down": _w((lambda *s: torch.randn(*s, dtype=torch.bfloat16) * 0.05)(F, D)),
        }
    _B_in = _B_setup()

    return {
        "A_x": _A_in["x"],
        "A_wq": _A_in["wq"],
        "A_wk": _A_in["wk"],
        "A_wv": _A_in["wv"],
        "A_wo": _A_in["wo"],
        "B_x": _B_in["x"],
        "B_w_gate": _B_in["w_gate"],
        "B_w_up": _B_in["w_up"],
        "B_w_down": _B_in["w_down"],
    }

def reference(A_x, A_wq, A_wk, A_wv, A_wo, B_x, B_w_gate, B_w_up, B_w_down):
    def _A_ref(x, wq, wk, wv, wo):
        B, S, D = x.shape
        H = 32
        Dh = D // H
        q = (lambda x, *d: x.permute(*d))((x @ wq).reshape(B, S, H, Dh), 0, 2, 1, 3)
        k = x @ wk
        v = x @ wv
        scores = torch.einsum("bhqd,bkd->bhqk", q, k) * (Dh ** -0.5)
        p = _softmax(scores, axis=-1)
        o = torch.einsum("bhqk,bkd->bhqd", p, v)
        return (lambda x, *d: x.permute(*d))(o, 0, 2, 1, 3).reshape(B, S, H * Dh) @ wo

    def _B_ref(x, w_gate, w_up, w_down):
        g = _silu(x @ w_gate)
        u = x @ w_up
        return (g * u) @ w_down

    x = A_x
    h = x + _A_ref(_layernorm(x, axis=-1), A_wq, A_wk, A_wv, A_wo)
    h2 = h + _B_ref(_layernorm(h, axis=-1), B_w_gate, B_w_up, B_w_down)
    return h2
```

```python
import sys
NAME = "sequential_preLN__grouped_kv_mqa__swiglu_ffn__prompt"

WS_Q   = 0x000000
WS_KF  = 0x200000
WS_VF  = 0x210000
WS_O   = 0x400000
WS_H   = 0x600000
WS_ST  = 0x800000
WS_CS  = 0x900000
WS_ACT = 0xA00000

ONES2 = 0x3F803F80
LOG2E = 1.4426950408889634

import struct
def f32(x):
    return "0x%08x" % struct.unpack("<I", struct.pack("<f", x))[0]

class Asm:
    def __init__(self):
        self.l = []
        self.uid = 0
    def __call__(self, s):
        for line in s.strip("\n").split("\n"):
            self.l.append("    " + line.strip())
    def label(self, s):
        self.l.append(s + ":")
    def newlabel(self, p):
        self.uid += 1
        return f"L_{p}_{self.uid}"
    def text(self):
        return "\n".join(self.l) + "\n"

def kheader(a, name):
    a.l.append(f".globl {name}")
    a.l.append(".p2align 8")
    a.l.append(f".type {name},@function")
    a.label(name)
    a("s_load_dwordx16 s[8:23], s[0:1], 0")
    a("s_load_dwordx8 s[24:31], s[0:1], 64")
S_X, S_WQ, S_WK, S_WV, S_WO, S_BX, S_WG, S_WU, S_WD, S_OUT, S_DBG, S_WS = [8+2*i for i in range(12)]

def kdesc(name, vgpr, sgpr=102, accum=None):
    if accum is None: accum = vgpr
    return f""".p2align 6
.amdhsa_kernel {name}
  .amdhsa_next_free_vgpr {vgpr}
  .amdhsa_next_free_sgpr {sgpr}
  .amdhsa_accum_offset {accum}
  .amdhsa_group_segment_fixed_size 0
  .amdhsa_kernarg_size 96
  .amdhsa_user_sgpr_count 2
  .amdhsa_user_sgpr_kernarg_segment_ptr 1
  .amdhsa_system_sgpr_workgroup_id_x 1
.end_amdhsa_kernel
"""

def sadd64(a, dst, src, imm):
    a(f"s_add_u32 s{dst}, s{src}, {imm}")
    a(f"s_addc_u32 s{dst+1}, s{src+1}, 0")

XROW = 272
XSZ = 64 * XROW
WPAN = 8192 + 128
WSZ = 2 * WPAN
STG = XSZ + WSZ
GEMM_LDS = 2 * STG

V_TID, V_L = 0, 1
V_SUM, V_SQ, V_ONE = 2, 3, 4
V_XLW, V_WLW, V_XLR, V_WLR = 5, 6, 7, 12
V_ONESF = 8
V_ACC = 16
V_CS = 32
V_XF = 48
V_WF = 56
V_XO = 64
V_WO = 68
V_T = 72
V_STA = 96
V_STB = 128
S_XB, S_WB, S_WB2 = 40, 42, 44
S_TOK0, S_N0, S_W = 46, 47, 48

def gemm64_setup(a, ldx, ldw, kv=False):
    a(f"v_and_b32 v{V_L}, 63, v0")
    a(f"v_lshrrev_b32 v{V_T}, 6, v0")
    a("s_nop 0")
    a(f"v_readfirstlane_b32 s{S_W}, v{V_T}")
    a(f"v_lshrrev_b32 v{V_T}, 4, v0")
    a(f"v_and_b32 v{V_T+1}, 15, v0")
    a(f"v_lshlrev_b32 v{V_T+1}, 4, v{V_T+1}")
    a(f"v_mul_u32_u24 v{V_XO}, {ldx}, v{V_T}")
    a(f"v_add_u32 v{V_XO}, v{V_XO}, v{V_T+1}")
    for q in range(1, 4):
        a(f"v_add_u32 v{V_XO+q}, {16*q*ldx}, v{V_XO}")
    a(f"v_mul_u32_u24 v{V_XLW}, {XROW}, v{V_T}")
    a(f"v_add_u32 v{V_XLW}, v{V_XLW}, v{V_T+1}")
    if not kv:
        a(f"v_lshrrev_b32 v{V_T}, 3, v0")
        a(f"v_and_b32 v{V_T+1}, 7, v0")
        a(f"v_lshlrev_b32 v{V_T+2}, 4, v{V_T+1}")
        a(f"v_mul_u32_u24 v{V_WO}, {ldw}, v{V_T}")
        a(f"v_add_u32 v{V_WO}, v{V_WO}, v{V_T+2}")
        for q in range(1, 4):
            a(f"v_add_u32 v{V_WO+q}, {32*q*ldw}, v{V_WO}")
        a(f"v_lshrrev_b32 v{V_T+2}, 2, v{V_T+1}")
        a(f"v_mul_u32_u24 v{V_WLW}, {WPAN}, v{V_T+2}")
        a(f"v_and_b32 v{V_T+1}, 3, v{V_T+1}")
        a(f"v_lshlrev_b32 v{V_T+1}, 4, v{V_T+1}")
        a(f"v_lshlrev_b32 v{V_T}, 6, v{V_T}")
        a(f"v_add3_u32 v{V_WLW}, v{V_WLW}, v{V_T}, v{V_T+1}")
        a(f"v_add_u32 v{V_WLW}, {XSZ}, v{V_WLW}")
    else:
        a(f"v_lshlrev_b32 v{V_WO}, 4, v0")
        a(f"v_lshrrev_b32 v{V_T}, 1, v0")
        a(f"v_and_b32 v{V_T+1}, 1, v0")
        a(f"v_lshlrev_b32 v{V_T+1}, 4, v{V_T+1}")
        a(f"v_lshlrev_b32 v{V_T}, 6, v{V_T}")
        a(f"v_add3_u32 v{V_WLW}, v{V_T}, v{V_T+1}, {0}")
        a(f"v_add_u32 v{V_WLW}, {XSZ}, v{V_WLW}")
    a(f"s_and_b32 s50, s{S_W}, 1")
    a(f"s_lshr_b32 s51, s{S_W}, 1")
    a(f"v_and_b32 v{V_T}, 31, v{V_L}")
    a(f"v_lshrrev_b32 v{V_T+1}, 5, v{V_L}")
    a(f"s_mul_i32 s52, s50, {32*XROW}")
    a(f"v_mul_u32_u24 v{V_XLR}, {XROW}, v{V_T}")
    a(f"v_lshl_add_u32 v{V_XLR}, v{V_T+1}, 4, v{V_XLR}")
    a(f"v_add_u32 v{V_XLR}, s52, v{V_XLR}")
    a(f"v_and_b32 v{V_T}, 15, v{V_L}")
    a(f"v_lshrrev_b32 v{V_T+2}, 2, v{V_T}")
    a(f"v_lshl_add_u32 v{V_T+2}, v{V_T+1}, 3, v{V_T+2}")
    a(f"v_lshlrev_b32 v{V_WLR}, 6, v{V_T+2}")
    a(f"v_bfe_u32 v{V_T+2}, v{V_L}, 4, 1")
    a(f"v_lshl_add_u32 v{V_WLR}, v{V_T+2}, 5, v{V_WLR}")
    a(f"v_and_b32 v{V_T+2}, 3, v{V_T}")
    a(f"v_lshl_add_u32 v{V_WLR}, v{V_T+2}, 3, v{V_WLR}")
    a(f"s_mul_i32 s52, s51, {WPAN}")
    a(f"s_add_u32 s52, s52, {XSZ}")
    a(f"v_add_u32 v{V_WLR}, s52, v{V_WLR}")
    a(f"v_mov_b32 v{V_ONE}, 0x{ONES2:x}")
    for i in range(4): a(f"v_mov_b32 v{V_ONESF+i}, 0x{ONES2:x}")
    a(f"v_mov_b32 v{V_SUM}, 0")
    a(f"v_mov_b32 v{V_SQ}, 0")
    for i in range(16):
        a(f"v_mov_b32 v{V_ACC+i}, 0")
        a(f"v_mov_b32 v{V_CS+i}, 0")

def gemm64_issue(a, st, ldw, kc=128, kv=False):
    n = 0
    if kc < 128:
        a(f"v_and_b32 v{V_T}, 15, v0")
        a(f"v_cmp_gt_u32 vcc, {kc*2//16}, v{V_T}")
        a("s_and_saveexec_b64 s[54:55], vcc")
    for q in range(4):
        a(f"global_load_dwordx4 v[{st+4*q}:{st+4*q+3}], v{V_XO+q}, s[{S_XB}:{S_XB+1}]")
        n += 1
    if kc < 128:
        a("s_mov_b64 exec, s[54:55]")
    if not kv:
        for q in range(4):
            if q*32 < kc:
                a(f"global_load_dwordx4 v[{st+16+4*q}:{st+16+4*q+3}], v{V_WO+q}, s[{S_WB}:{S_WB+1}]")
                n += 1
        sadd64(a, S_WB, S_WB, 128*ldw)
    else:
        a(f"global_load_dwordx4 v[{st+16}:{st+19}], v{V_WO}, s[{S_WB}:{S_WB+1}]")
        a(f"global_load_dwordx4 v[{st+20}:{st+23}], v{V_WO}, s[{S_WB2}:{S_WB2+1}]")
        n += 2
        sadd64(a, S_WB, S_WB, 128*32)
        sadd64(a, S_WB2, S_WB2, 128*32)
    sadd64(a, S_XB, S_XB, 256)
    return n

def gemm64_store(a, st, buf, kc=128, kv=False):
    b = buf * STG
    for q in range(4):
        a(f"ds_write_b128 v{V_XLW}, v[{st+4*q}:{st+4*q+3}] offset:{b + q*16*XROW}")
    if not kv:
        for q in range(4):
            if q*32 < kc:
                a(f"ds_write_b128 v{V_WLW}, v[{st+16+4*q}:{st+16+4*q+3}] offset:{b + q*32*64}")
    else:
        a(f"ds_write_b128 v{V_WLW}, v[{st+16}:{st+19}] offset:{b}")
        a(f"ds_write_b128 v{V_WLW}, v[{st+20}:{st+23}] offset:{b+32}")

def gemm64_compute(a, buf, nsteps=8, stats=False, colsum=False):
    b = buf * STG
    def rd(s):
        p = s & 1
        a(f"ds_read_b128 v[{V_XF+4*p}:{V_XF+4*p+3}], v{V_XLR} offset:{b + s*32}")
        a(f"ds_read_b64_tr_b16 v[{V_WF+4*p}:{V_WF+4*p+1}], v{V_WLR} offset:{b + s*1024}")
        a(f"ds_read_b64_tr_b16 v[{V_WF+4*p+2}:{V_WF+4*p+3}], v{V_WLR} offset:{b + s*1024 + 256}")
    rd(0)
    for s in range(nsteps):
        p = s & 1
        if s + 1 < nsteps:
            rd(s + 1)
            a("s_waitcnt lgkmcnt(3)")
        else:
            a("s_waitcnt lgkmcnt(0)")
        a(f"v_mfma_f32_32x32x16_bf16 v[{V_ACC}:{V_ACC+15}], v[{V_WF+4*p}:{V_WF+4*p+3}], v[{V_XF+4*p}:{V_XF+4*p+3}], v[{V_ACC}:{V_ACC+15}]")
        if colsum:
            a(f"v_mfma_f32_32x32x16_bf16 v[{V_CS}:{V_CS+15}], v[{V_WF+4*p}:{V_WF+4*p+3}], v[{V_ONESF}:{V_ONESF+3}], v[{V_CS}:{V_CS+15}]")
        if stats:
            for i in range(4):
                a(f"v_dot2c_f32_bf16 v{V_SUM}, v{V_XF+4*p+i}, v{V_ONE}")
                a(f"v_dot2c_f32_bf16 v{V_SQ}, v{V_XF+4*p+i}, v{V_XF+4*p+i}")

def gemm64_main(a, K, ldw, stats=False, colsum=False, kv=False, skiplabel=None):
    chunks = []
    k = K
    while k > 0:
        chunks.append(min(128, k)); k -= min(128, k)
    n = len(chunks)
    sets = [V_STA, V_STB]
    cnt = {}
    cnt[0] = gemm64_issue(a, sets[0], ldw, chunks[0], kv)
    cnt[1] = gemm64_issue(a, sets[1], ldw, chunks[1], kv)
    a(f"s_waitcnt vmcnt({cnt[1]})")
    gemm64_store(a, sets[0], 0, chunks[0], kv)
    if n > 2:
        cnt[2] = gemm64_issue(a, sets[0], ldw, chunks[2], kv)
    a("s_waitcnt lgkmcnt(0)")
    a("s_barrier")
    for c in range(n):
        if kv:
            lab = a.newlabel("kvskip")
            a(f"s_cmp_lg_u32 s51, 0")
            a(f"s_cbranch_scc1 {lab}")
        gemm64_compute(a, c & 1, chunks[c] // 16, stats, colsum)
        if kv:
            a.label(lab)
        if c + 1 < n:
            a(f"s_waitcnt vmcnt({cnt[c+2] if c+2 < n else 0})")
            gemm64_store(a, sets[(c+1) & 1], (c+1) & 1, chunks[c+1], kv)
            if c + 3 < n:
                cnt[c+3] = gemm64_issue(a, sets[(c+1) & 1], ldw, chunks[c+3], kv)
            a("s_waitcnt lgkmcnt(0)")
            a("s_barrier")
    a("s_nop 15")
    a("s_nop 7")

def ln_finish(a, K, scale):
    t = V_T
    a(f"v_mov_b32 v{t}, v{V_SUM}")
    a(f"v_mov_b32 v{t+1}, v{V_SQ}")
    a("s_nop 1")
    a(f"v_permlane32_swap_b32 v{V_SUM}, v{t}")
    a(f"v_permlane32_swap_b32 v{V_SQ}, v{t+1}")
    a("s_nop 1")
    a(f"v_add_f32 v{V_SUM}, v{V_SUM}, v{t}")
    a(f"v_add_f32 v{V_SQ}, v{V_SQ}, v{t+1}")
    a(f"v_mul_f32 v{V_SUM}, {f32(1.0/K)}, v{V_SUM}")
    a(f"v_mul_f32 v{V_SQ}, {f32(1.0/K)}, v{V_SQ}")
    a(f"v_fma_f32 v{V_SQ}, -v{V_SUM}, v{V_SUM}, v{V_SQ}")
    a(f"v_max_f32 v{V_SQ}, 0, v{V_SQ}")
    a(f"v_add_f32 v{V_SQ}, {f32(1e-5)}, v{V_SQ}")
    a(f"v_rsq_f32 v{V_SQ}, v{V_SQ}")
    a("s_nop 0")
    if scale != 1.0:
        a(f"v_mul_f32 v{V_SQ}, {f32(scale)}, v{V_SQ}")

def gen_k1():
    a = Asm()
    name = "k1_qkv_kernel"
    kheader(a, name)
    a("s_cmp_ge_u32 s2, 374")
    a("s_cbranch_scc1 L_k1_exit")
    a("s_cmp_ge_u32 s2, 288")
    a("s_cbranch_scc1 L_k1_colsum")
    a("s_mul_i32 s3, s2, 7282")
    a("s_lshr_b32 s3, s3, 16")
    a("s_mul_i32 s4, s3, 9")
    a("s_sub_u32 s4, s2, s4")
    a(f"s_lshl_b32 s{S_TOK0}, s3, 6")
    a("s_waitcnt lgkmcnt(0)")
    a(f"s_lshl_b32 s5, s{S_TOK0}, 10")
    sadd64(a, S_XB, S_X, "s5")
    a("s_cmp_eq_u32 s4, 8")
    a("s_cbranch_scc1 L_k1_kv")
    a("s_lshl_b32 s5, s4, 7")
    sadd64(a, S_WB, S_WQ, "s5")
    gemm64_setup(a, 1024, 1024)
    gemm64_main(a, 512, 1024, stats=True, colsum=True)
    ln_finish(a, 512, 0.25 * LOG2E)
    for i in range(16):
        a(f"v_fma_f32 v{V_ACC+i}, -v{V_SUM}, v{V_CS+i}, v{V_ACC+i}")
    for i in range(16):
        a(f"v_mul_f32 v{V_ACC+i}, v{V_SQ}, v{V_ACC+i}")
    for i in range(8):
        a(f"v_cvt_pk_bf16_f32 v{V_CS+i}, v{V_ACC+2*i}, v{V_ACC+2*i+1}")
    t = V_T
    a(f"v_and_b32 v{t}, 31, v{V_L}")
    a(f"v_lshrrev_b32 v{t+1}, 5, v{V_L}")
    a(f"v_lshlrev_b32 v{t}, 10, v{t}")
    a(f"v_lshl_add_u32 v{t}, v{t+1}, 3, v{t}")
    a(f"s_lshl_b32 s5, s50, 5")
    a(f"s_add_u32 s5, s5, s{S_TOK0}")
    a("s_lshl_b32 s5, s5, 10")
    a("s_lshl_b32 s6, s4, 7")
    a("s_add_u32 s5, s5, s6")
    a("s_lshl_b32 s6, s51, 6")
    a("s_add_u32 s5, s5, s6")
    a(f"s_add_u32 s5, s5, {WS_Q}")
    sadd64(a, 56, S_WS, "s5")
    for g in range(4):
        a(f"global_store_dwordx2 v{t}, v[{V_CS+2*g}:{V_CS+2*g+1}], s[56:57] offset:{16*g}")
    a("s_endpgm")
    a.label("L_k1_kv")
    a(f"s_mov_b32 s{S_WB}, s{S_WK}")
    a(f"s_mov_b32 s{S_WB+1}, s{S_WK+1}")
    a(f"s_mov_b32 s{S_WB2}, s{S_WV}")
    a(f"s_mov_b32 s{S_WB2+1}, s{S_WV+1}")
    gemm64_setup(a, 1024, 32, kv=True)
    gemm64_main(a, 512, 32, stats=True, colsum=True, kv=True)
    a("s_cmp_lg_u32 s51, 0")
    a("s_cbranch_scc1 L_k1_exit")
    ln_finish(a, 512, 1.0)
    for i in range(16):
        a(f"v_fma_f32 v{V_ACC+i}, -v{V_SUM}, v{V_CS+i}, v{V_ACC+i}")
    for i in range(16):
        a(f"v_mul_f32 v{V_ACC+i}, v{V_SQ}, v{V_ACC+i}")
    for i in range(8):
        a(f"v_cvt_pk_bf16_f32 v{V_CS+i}, v{V_ACC+2*i}, v{V_ACC+2*i+1}")
    a(f"v_and_b32 v{t}, 31, v{V_L}")
    a(f"v_lshrrev_b32 v{t+1}, 5, v{V_L}")
    a(f"v_lshlrev_b32 v{t+2}, 4, v{t}")
    a(f"v_lshl_add_u32 v{t+2}, v{t+1}, 3, v{t+2}")
    a(f"s_lshr_b32 s5, s{S_TOK0}, 5")
    a("s_add_u32 s5, s5, s50")
    a("s_lshl_b32 s5, s5, 10")
    a(f"s_add_u32 s6, s5, {WS_KF}")
    sadd64(a, 56, S_WS, "s6")
    a(f"global_store_dwordx2 v{t+2}, v[{V_CS}:{V_CS+1}], s[56:57]")
    a(f"global_store_dwordx2 v{t+2}, v[{V_CS+2}:{V_CS+3}], s[56:57] offset:512")
    a(f"v_lshrrev_b32 v{t+3}, 4, v{t}")
    a(f"v_lshlrev_b32 v{t+3}, 9, v{t+3}")
    a(f"v_bfe_u32 v{t+4}, v{t}, 2, 1")
    a(f"v_lshl_add_u32 v{t+3}, v{t+4}, 8, v{t+3}")
    a(f"v_bfe_u32 v{t+4}, v{t}, 3, 1")
    a(f"v_lshl_add_u32 v{t+3}, v{t+4}, 3, v{t+3}")
    a(f"v_and_b32 v{t+4}, 3, v{t}")
    a(f"v_lshl_add_u32 v{t+3}, v{t+4}, 1, v{t+3}")
    a(f"v_lshl_add_u32 v{t+3}, v{t+1}, 6, v{t+3}")
    a(f"s_add_u32 s6, s5, {WS_VF}")
    sadd64(a, 56, S_WS, "s6")
    for i in range(8, 16):
        m = (i & 3) + 8 * ((i - 8) >> 2)
        r = V_CS + i // 2
        if i & 1:
            a(f"global_store_short_d16_hi v{t+3}, v{r}, s[56:57] offset:{m*16}")
        else:
            a(f"global_store_short v{t+3}, v{r}, s[56:57] offset:{m*16}")
    a("s_endpgm")
    a.label("L_k1_colsum")
    a("s_sub_u32 s3, s2, 288")
    a("s_waitcnt lgkmcnt(0)")
    a(f"s_mov_b32 s40, s{S_WG}")
    a(f"s_mov_b32 s41, s{S_WG+1}")
    a("s_mov_b32 s4, s3")
    a("s_cmp_lt_u32 s3, 43")
    a("s_cbranch_scc1 L_k1_cs1")
    a(f"s_mov_b32 s40, s{S_WU}")
    a(f"s_mov_b32 s41, s{S_WU+1}")
    a("s_sub_u32 s4, s3, 43")
    a.label("L_k1_cs1")
    a("s_lshl_b32 s5, s4, 6")
    sadd64(a, 40, 40, "s5")
    a("v_and_b32 v1, 3, v0")
    a("v_lshrrev_b32 v2, 2, v0")
    a("v_mul_u32_u24 v3, 2752, v2")
    a("v_lshl_add_u32 v3, v1, 4, v3")
    for it in range(8):
        a(f"global_load_dwordx4 v[{16+4*it}:{19+4*it}], v3, s[40:41]")
        if it < 7: sadd64(a, 40, 40, 64*2752)
    for i in range(8): a(f"v_mov_b32 v{4+i}, 0")
    for it in range(8):
        a(f"s_waitcnt vmcnt({7-it})")
        for i in range(4):
            a(f"v_lshlrev_b32 v12, 16, v{16+4*it+i}")
            a(f"v_and_b32 v13, 0xffff0000, v{16+4*it+i}")
            a(f"v_add_f32 v{4+2*i}, v{4+2*i}, v12")
            a(f"v_add_f32 v{5+2*i}, v{5+2*i}, v13")
    a("v_lshlrev_b32 v14, 7, v2")
    a("v_lshl_add_u32 v14, v1, 5, v14")
    a("ds_write_b128 v14, v[4:7]")
    a("ds_write_b128 v14, v[8:11] offset:16")
    a("s_waitcnt lgkmcnt(0)")
    a("s_barrier")
    a("v_cmp_gt_u32 vcc, 32, v0")
    a("s_and_saveexec_b64 s[54:55], vcc")
    a("s_cbranch_execz L_k1_exit")
    a("v_lshlrev_b32 v14, 2, v0")
    a("v_mov_b32 v4, 0")
    for blk in range(4):
        for r in range(16):
            a(f"ds_read_b32 v{16+r}, v14 offset:{(blk*16+r)*128}")
        a("s_waitcnt lgkmcnt(0)")
        for r in range(16):
            a(f"v_add_f32 v4, v4, v{16+r}")
    a("s_lshl_b32 s5, s3, 7")
    a(f"s_add_u32 s5, s5, {WS_CS}")
    sadd64(a, 56, S_WS, "s5")
    a("global_store_dword v14, v4, s[56:57]")
    a.label("L_k1_exit")
    a("s_endpgm")
    return name, a.text(), kdesc(name, 160)

def gen_k2():
    a = Asm()
    name = "k2_attn_kernel"
    kheader(a, name)
    Q, NM, S0, S1, P0, P1, O = 4, 8, 24, 40, 56, 64, 72
    KF0, KF1, VFA, VFB = 88, 92, 96, 104
    VKA, VVA, T = 112, 113, 114
    a("s_cmp_ge_u32 s2, 256")
    a("s_cbranch_scc1 L_k2_exit")
    a("v_and_b32 v1, 63, v0")
    a("v_lshrrev_b32 v2, 6, v0")
    a("s_nop 0")
    a("v_readfirstlane_b32 s3, v2")
    a("s_waitcnt lgkmcnt(0)")
    sadd64(a, 40, S_WS, WS_KF)
    a("v_lshlrev_b32 v3, 4, v0")
    for r in range(8):
        a(f"global_load_dwordx4 v[{24+4*r}:{27+4*r}], v3, s[40:41]")
        if r < 7: sadd64(a, 40, 40, 16384)
    a("s_lshr_b32 s4, s3, 1")
    a("s_lshl_b32 s5, s2, 3")
    a("s_add_u32 s4, s4, s5")
    a("s_and_b32 s6, s3, 1")
    a("s_lshl_b32 s5, s4, 10")
    a(f"s_add_u32 s7, s5, {WS_Q}")
    sadd64(a, 42, S_WS, "s7")
    a("v_and_b32 v2, 31, v1")
    a("v_lshrrev_b32 v3, 5, v1")
    a(f"v_lshlrev_b32 v{T}, 5, v2")
    a(f"v_lshl_add_u32 v{T}, v3, 4, v{T}")
    a(f"global_load_dwordx4 v[{Q}:{Q+3}], v{T}, s[42:43]")
    a("v_lshlrev_b32 v3, 4, v0")
    a("v_add_u32 v2, 0x10000, v3")
    for r in range(8):
        a(f"s_waitcnt vmcnt({8-r})")
        a(f"ds_write_b128 v{3 if r < 4 else 2}, v[{24+4*r}:{27+4*r}] offset:{(r&3)*16384}")
    a("s_lshl_b32 s7, s6, 15")
    a(f"v_lshlrev_b32 v{VKA}, 4, v1")
    a(f"v_add_u32 v{VKA}, s7, v{VKA}")
    a(f"v_lshrrev_b32 v{T}, 5, v1")
    a(f"v_and_b32 v{T+1}, 15, v1")
    a(f"v_lshlrev_b32 v{VVA}, 8, v{T}")
    a(f"v_lshl_add_u32 v{VVA}, v{T+1}, 4, v{VVA}")
    a(f"v_add_u32 v{VVA}, s7, v{VVA}")
    a(f"v_add_u32 v{VVA}, 0x10000, v{VVA}")
    a(f"v_and_b32 v{T}, 31, v1")
    a(f"v_cmp_eq_u32 vcc, 16, v{T}")
    a(f"v_mov_b32 v{T+1}, 0x{ONES2:x}")
    a(f"v_cndmask_b32 v{T+1}, 0, v{T+1}, vcc")
    for i in range(16):
        a(f"v_mov_b32 v{VFA+i}, v{T+1}")
    a("s_mov_b32 s44, 0x0000ffff")
    a("s_mov_b32 s45, 0x0000ffff")
    a("s_mov_b32 s46, 0")
    a("s_waitcnt vmcnt(0) lgkmcnt(0)")
    a("s_barrier")
    a(f"ds_read_b128 v[{KF0}:{KF0+3}], v{VKA}")
    a("s_waitcnt lgkmcnt(0)")
    a(f"v_mfma_f32_32x32x16_bf16 v[{S0}:{S0+15}], v[{KF0}:{KF0+3}], v[{Q}:{Q+3}], 0")
    a("s_nop 15")
    a("s_nop 3")
    def maxred(base):
        a(f"v_max3_f32 v{T}, v{base}, v{base+1}, v{base+2}")
        for i in range(3, 15, 2):
            a(f"v_max3_f32 v{T}, v{T}, v{base+i}, v{base+i+1}")
        a(f"v_max_f32 v{T}, v{T}, v{base+15}")
    maxred(S0)
    a.label("L_k2_setm")
    a(f"v_mov_b32 v{T+1}, v{T}")
    a("s_nop 1")
    a(f"v_permlane32_swap_b32 v{T}, v{T+1}")
    a("s_nop 1")
    a(f"v_max_f32 v{T}, v{T}, v{T+1}")
    for i in range(16):
        a(f"v_sub_f32 v{NM+i}, 0, v{T}")
    for i in range(16):
        a(f"v_mov_b32 v{O+i}, 0")
    def rdK(reg, off):
        a(f"ds_read_b128 v[{reg}:{reg+3}], v{VKA} offset:{off}")
    def rdV(reg, off):
        a("s_mov_b64 exec, s[44:45]")
        a(f"ds_read_b128 v[{reg}:{reg+3}], v{VVA} offset:{off}")
        a(f"ds_read_b128 v[{reg+4}:{reg+7}], v{VVA} offset:{off+512}")
        a("s_mov_b64 exec, -1")
    def qk(S, kf):
        a(f"v_mfma_f32_32x32x16_bf16 v[{S}:{S+15}], v[{kf}:{kf+3}], v[{Q}:{Q+3}], v[{NM}:{NM+15}]")
    def soft(S, P):
        for i in range(16): a(f"v_exp_f32 v{S+i}, v{S+i}")
        for i in range(8): a(f"v_cvt_pk_bf16_f32 v{P+i}, v{S+2*i}, v{S+2*i+1}")
        a("s_nop 1")
    def pv(vf, P):
        a(f"v_mfma_f32_32x32x16_bf16 v[{O}:{O+15}], v[{vf}:{vf+3}], v[{P}:{P+3}], v[{O}:{O+15}]")
        a(f"v_mfma_f32_32x32x16_bf16 v[{O}:{O+15}], v[{vf+4}:{vf+7}], v[{P+4}:{P+7}], v[{O}:{O+15}]")
    VK2, VV2 = T+2, T+3
    a(f"v_mov_b32 v{VK2}, v{VKA}")
    a(f"v_mov_b32 v{VV2}, v{VVA}")
    VKsave, VVsave = VKA, VVA
    def rdK2(reg, off): a(f"ds_read_b128 v[{reg}:{reg+3}], v{VK2} offset:{off}")
    def rdV2(reg, off):
        a("s_mov_b64 exec, s[44:45]")
        a(f"ds_read_b128 v[{reg}:{reg+3}], v{VV2} offset:{off}")
        a(f"ds_read_b128 v[{reg+4}:{reg+7}], v{VV2} offset:{off+512}")
        a("s_mov_b64 exec, -1")
    rdK2(KF0, 0)
    rdK2(KF1, 1024)
    rdV2(VFA, 0)
    a("s_waitcnt lgkmcnt(3)")
    qk(S0, KF0)
    a("s_mov_b32 s47, 16")
    a.label("L_k2_loop")
    rdK2(KF0, 2048)
    a("s_waitcnt lgkmcnt(1)")
    qk(S1, KF1)
    rdV2(VFB, 1024)
    soft(S0, P0)
    pv(VFA, P0)
    rdK2(KF1, 3072)
    a("s_waitcnt lgkmcnt(1)")
    qk(S0, KF0)
    rdV2(VFA, 2048)
    soft(S1, P1)
    pv(VFB, P1)
    a(f"v_add_u32 v{VK2}, 2048, v{VK2}")
    a(f"v_add_u32 v{VV2}, 2048, v{VV2}")
    a("s_sub_u32 s47, s47, 1")
    a("s_cmp_lg_u32 s47, 0")
    a("s_cbranch_scc1 L_k2_loop")
    a("s_waitcnt lgkmcnt(0)")
    a("s_nop 15")
    a("s_nop 3")
    a("s_cmp_lg_u32 s46, 0")
    a("s_cbranch_scc1 L_k2_merge")
    a(f"v_mul_f32 v{T}, {f32(2.0**28)}, v{O+8}")
    a(f"v_mul_f32 v{T}, 0, v{T}")
    for i in range(8):
        a(f"v_fma_f32 v{T}, v{O+i}, 0, v{T}")
    a(f"v_cmp_u_f32 vcc, v{T}, v{T}")
    a("s_cbranch_vccz L_k2_merge")
    a("s_mov_b32 s46, 1")
    a(f"v_mov_b32 v{VK2}, v{VKA}")
    a(f"v_mov_b32 v{T}, 0xff800000")
    a("s_mov_b32 s47, 32")
    a.label("L_k2_fb")
    rdK2(KF0, 0)
    a("s_waitcnt lgkmcnt(0)")
    a(f"v_mfma_f32_32x32x16_bf16 v[{S0}:{S0+15}], v[{KF0}:{KF0+3}], v[{Q}:{Q+3}], 0")
    a("s_nop 15")
    a("s_nop 3")
    for i in range(0, 16, 2):
        a(f"v_max3_f32 v{T}, v{T}, v{S0+i}, v{S0+i+1}")
    a(f"v_add_u32 v{VK2}, 1024, v{VK2}")
    a("s_sub_u32 s47, s47, 1")
    a("s_cmp_lg_u32 s47, 0")
    a("s_cbranch_scc1 L_k2_fb")
    a("s_branch L_k2_setm")
    a.label("L_k2_merge")
    a("s_barrier")
    a("s_lshr_b32 s5, s3, 1")
    a("s_mul_i32 s5, s5, 2560")
    a(f"v_lshlrev_b32 v{T}, 2, v1")
    a(f"v_add_u32 v{T}, s5, v{T}")
    a("s_cmp_eq_u32 s6, 0")
    a("s_cbranch_scc1 L_k2_m0")
    a(f"ds_write_b32 v{T}, v{NM}")
    for i in range(9):
        a(f"ds_write_b32 v{T}, v{O+i} offset:{256*(i+1)}")
    a("s_waitcnt lgkmcnt(0)")
    a("s_barrier")
    a("s_endpgm")
    a.label("L_k2_m0")
    a("s_barrier")
    a(f"ds_read_b32 v{S0}, v{T}")
    for i in range(9):
        a(f"ds_read_b32 v{S0+1+i}, v{T} offset:{256*(i+1)}")
    a("s_waitcnt lgkmcnt(0)")
    a(f"v_min_f32 v{T}, v{NM}, v{S0}")
    a(f"v_sub_f32 v{T+1}, v{T}, v{NM}")
    a(f"v_sub_f32 v{T+2}, v{T}, v{S0}")
    a(f"v_exp_f32 v{T+1}, v{T+1}")
    a(f"v_exp_f32 v{T+2}, v{T+2}")
    a("s_nop 0")
    for i in range(9):
        a(f"v_mul_f32 v{O+i}, v{T+1}, v{O+i}")
        a(f"v_fma_f32 v{O+i}, v{T+2}, v{S0+1+i}, v{O+i}")
    a(f"v_mov_b32 v{T}, v{O+8}")
    a(f"v_mov_b32 v{T+1}, v{O+8}")
    a("s_nop 1")
    a(f"v_permlane32_swap_b32 v{T}, v{T+1}")
    a("s_nop 1")
    a(f"v_rcp_f32 v{T}, v{T}")
    a("s_nop 0")
    for i in range(8):
        a(f"v_mul_f32 v{O+i}, v{T}, v{O+i}")
    for i in range(4):
        a(f"v_cvt_pk_bf16_f32 v{P0+i}, v{O+2*i}, v{O+2*i+1}")
    a("v_and_b32 v2, 31, v1")
    a("v_lshrrev_b32 v3, 5, v1")
    a("v_lshlrev_b32 v2, 5, v2")
    a("v_lshl_add_u32 v2, v3, 3, v2")
    a("s_lshl_b32 s5, s4, 10")
    a(f"s_add_u32 s5, s5, {WS_O}")
    sadd64(a, 42, S_WS, "s5")
    a(f"global_store_dwordx2 v2, v[{P0}:{P0+1}], s[42:43]")
    a(f"global_store_dwordx2 v2, v[{P0+2}:{P0+3}], s[42:43] offset:16")
    a.label("L_k2_exit")
    a("s_endpgm")
    return name, a.text(), kdesc(name, 128)

def res_gemm(name, K, ldx, xbase_ws, xoff, wsreg, res_reg, res_off, out_reg, out_off, stats):
    a = Asm()
    kheader(a, name)
    ex = f"L_{name}_exit"
    a("s_cmp_ge_u32 s2, 256")
    a(f"s_cbranch_scc1 {ex}")
    a("s_lshr_b32 s3, s2, 3")
    a("s_and_b32 s4, s2, 7")
    a(f"s_lshl_b32 s{S_TOK0}, s3, 6")
    a("s_waitcnt lgkmcnt(0)")
    a(f"s_mul_i32 s5, s{S_TOK0}, {ldx}")
    a(f"s_add_u32 s5, s5, {xoff}")
    sadd64(a, S_XB, S_WS, "s5")
    a("s_lshl_b32 s5, s4, 7")
    sadd64(a, S_WB, wsreg, "s5")
    gemm64_setup(a, ldx, 1024)
    t = V_T
    R = 160
    a(f"v_and_b32 v{t}, 31, v{V_L}")
    a(f"v_lshrrev_b32 v{t+1}, 5, v{V_L}")
    a(f"v_lshlrev_b32 v{R+8}, 10, v{t}")
    a(f"v_lshl_add_u32 v{R+8}, v{t+1}, 3, v{R+8}")
    a(f"s_lshl_b32 s5, s50, 5")
    a(f"s_add_u32 s5, s5, s{S_TOK0}")
    a("s_lshl_b32 s5, s5, 10")
    a("s_lshl_b32 s6, s4, 7")
    a("s_add_u32 s5, s5, s6")
    a("s_lshl_b32 s6, s51, 6")
    a("s_add_u32 s5, s5, s6")
    a(f"s_add_u32 s6, s5, {res_off}")
    sadd64(a, 56, res_reg, "s6")
    a(f"s_add_u32 s6, s5, {out_off}")
    sadd64(a, 58, out_reg, "s6")
    for g in range(4):
        a(f"global_load_dwordx2 v[{R+2*g}:{R+2*g+1}], v{R+8}, s[56:57] offset:{16*g}")
    gemm64_main(a, K, 1024)
    for i in range(8):
        a(f"v_lshlrev_b32 v{t}, 16, v{R+i}")
        a(f"v_and_b32 v{t+1}, 0xffff0000, v{R+i}")
        a(f"v_add_f32 v{V_ACC+2*i}, v{V_ACC+2*i}, v{t}")
        a(f"v_add_f32 v{V_ACC+2*i+1}, v{V_ACC+2*i+1}, v{t+1}")
    for i in range(8):
        a(f"v_cvt_pk_bf16_f32 v{V_CS+i}, v{V_ACC+2*i}, v{V_ACC+2*i+1}")
    for g in range(4):
        a(f"global_store_dwordx2 v{R+8}, v[{V_CS+2*g}:{V_CS+2*g+1}], s[58:59] offset:{16*g}")
    if stats:
        for i in range(8):
            a(f"v_dot2c_f32_bf16 v{V_SUM}, v{V_CS+i}, v{V_ONE}")
            a(f"v_dot2c_f32_bf16 v{V_SQ}, v{V_CS+i}, v{V_CS+i}")
        a(f"v_mov_b32 v{t}, v{V_SUM}")
        a(f"v_mov_b32 v{t+1}, v{V_SQ}")
        a("s_nop 1")
        a(f"v_permlane32_swap_b32 v{V_SUM}, v{t}")
        a(f"v_permlane32_swap_b32 v{V_SQ}, v{t+1}")
        a("s_nop 1")
        a(f"v_add_f32 v{V_SUM}, v{V_SUM}, v{t}")
        a(f"v_add_f32 v{V_SQ}, v{V_SQ}, v{t+1}")
        a(f"v_and_b32 v{t}, 31, v{V_L}")
        a(f"v_lshlrev_b32 v{t}, 7, v{t}")
        a(f"s_lshl_b32 s5, s50, 5")
        a(f"s_add_u32 s5, s5, s{S_TOK0}")
        a("s_lshl_b32 s5, s5, 7")
        a("s_lshl_b32 s6, s4, 4")
        a("s_add_u32 s5, s5, s6")
        a("s_lshl_b32 s6, s51, 3")
        a("s_add_u32 s5, s5, s6")
        a(f"s_add_u32 s5, s5, {WS_ST}")
        sadd64(a, 56, S_WS, "s5")
        a(f"v_cmp_gt_u32 vcc, 32, v{V_L}")
        a("s_and_saveexec_b64 s[54:55], vcc")
        a(f"global_store_dwordx2 v{t}, v[{V_SUM}:{V_SUM+1}], s[56:57]")
    a.label(ex)
    a("s_endpgm")
    return name, a.text(), kdesc(name, 176)

def gen_k3():
    return res_gemm("k3_wo_kernel", 512, 1024, None, WS_O, S_WO, S_X, 0, S_WS, WS_H, True)
def gen_k5():
    return res_gemm("k5_down_kernel", 1376, 2752, None, WS_ACT, S_WD, S_WS, WS_H, S_OUT, 0, False)

def gen_k4():
    a = Asm()
    name = "k4_ffn_kernel"
    kheader(a, name)
    XR = 144
    XS = 128 * XR
    WP = 4096 + 64
    WS_ = 6 * WP
    ST = XS + WS_
    L, T = 1, 2
    XLW, WLW, XLR, WLR = 8, 9, 10, 11
    XO, WO = 12, 16
    MEAN, RSTD = 17, 18
    XF = 20
    WF = 28
    ACC = 80
    STA = 176
    STB = 216
    a("s_cmp_ge_u32 s2, 256")
    a("s_cbranch_scc1 L_k4_exit")
    a("s_lshr_b32 s3, s2, 4")
    a("s_and_b32 s4, s2, 15")
    a("s_mul_i32 s5, s4, 3")
    a("s_lshl_b32 s6, s4, 1")
    a("s_add_u32 s6, s6, 11")
    a("s_cmp_lt_u32 s4, 11")
    a("s_cselect_b32 s5, s5, s6")
    a("s_cselect_b32 s49, 3, 2")
    a("s_add_u32 s6, s5, 2")
    a("s_min_u32 s6, s6, 42")
    a("s_sub_u32 s6, s6, s5")
    a("s_lshl_b32 s48, s6, 6")
    a("s_lshl_b32 s47, s3, 7")
    a("s_waitcnt lgkmcnt(0)")
    a("s_lshl_b32 s6, s47, 10")
    a(f"s_add_u32 s6, s6, {WS_H}")
    sadd64(a, 40, S_WS, "s6")
    a("s_lshl_b32 s6, s5, 6")
    sadd64(a, 42, S_WG, "s6")
    sadd64(a, 44, S_WU, "s6")
    a(f"v_and_b32 v{L}, 63, v0")
    a(f"v_lshrrev_b32 v{T}, 6, v0")
    a("s_nop 0")
    a(f"v_readfirstlane_b32 s50, v{T}")
    a(f"v_lshrrev_b32 v{T}, 3, v0")
    a(f"v_and_b32 v{T+1}, 7, v0")
    a(f"v_lshlrev_b32 v{T+1}, 4, v{T+1}")
    a(f"v_lshl_add_u32 v{XO}, v{T}, 10, v{T+1}")
    for q in range(1, 4):
        a(f"v_add_u32 v{XO+q}, {32*q*1024}, v{XO}")
    a(f"v_mul_u32_u24 v{XLW}, {XR}, v{T}")
    a(f"v_add_u32 v{XLW}, v{XLW}, v{T+1}")
    a(f"v_lshrrev_b32 v{T}, 2, v0")
    a(f"v_and_b32 v{T+1}, 3, v0")
    a(f"v_lshlrev_b32 v{T+1}, 4, v{T+1}")
    a(f"v_mul_u32_u24 v{WO}, 2752, v{T}")
    a(f"v_add_u32 v{WO}, v{WO}, v{T+1}")
    a(f"v_add_u32 v{WO+3}, s48, v{WO}")
    a(f"v_lshl_add_u32 v{WLW}, v{T}, 6, v{T+1}")
    a(f"v_add_u32 v{WLW}, {XS}, v{WLW}")
    a(f"v_and_b32 v{T}, 31, v{L}")
    a(f"v_lshrrev_b32 v{T+1}, 5, v{L}")
    a(f"s_mul_i32 s52, s50, {32*XR}")
    a(f"v_mul_u32_u24 v{XLR}, {XR}, v{T}")
    a(f"v_lshl_add_u32 v{XLR}, v{T+1}, 4, v{XLR}")
    a(f"v_add_u32 v{XLR}, s52, v{XLR}")
    a(f"v_and_b32 v{T}, 15, v{L}")
    a(f"v_lshrrev_b32 v{T+2}, 2, v{T}")
    a(f"v_lshl_add_u32 v{T+2}, v{T+1}, 3, v{T+2}")
    a(f"v_lshlrev_b32 v{WLR}, 6, v{T+2}")
    a(f"v_bfe_u32 v{T+2}, v{L}, 4, 1")
    a(f"v_lshl_add_u32 v{WLR}, v{T+2}, 5, v{WLR}")
    a(f"v_and_b32 v{T+2}, 3, v{T}")
    a(f"v_lshl_add_u32 v{WLR}, v{T+2}, 3, v{WLR}")
    a(f"v_add_u32 v{WLR}, {XS}, v{WLR}")
    a(f"v_add_u32 v6, {ST}, v{WLR}")
    for i in range(96): a(f"v_mov_b32 v{ACC+i}, 0")
    NL = 10
    def issue(st):
        for q in range(4):
            a(f"global_load_dwordx4 v[{st+4*q}:{st+4*q+3}], v{XO+q}, s[40:41]")
        for m, sb in enumerate((42, 44)):
            a(f"global_load_dwordx4 v[{st+16+12*m}:{st+19+12*m}], v{WO}, s[{sb}:{sb+1}]")
            a(f"global_load_dwordx4 v[{st+20+12*m}:{st+23+12*m}], v{WO}, s[{sb}:{sb+1}] offset:64")
            a(f"global_load_dwordx4 v[{st+24+12*m}:{st+27+12*m}], v{WO+3}, s[{sb}:{sb+1}]")
        sadd64(a, 40, 40, 128)
        sadd64(a, 42, 42, 64*2752)
        sadd64(a, 44, 44, 64*2752)
    def store(st, buf):
        b = buf * ST
        for q in range(4):
            a(f"ds_write_b128 v{XLW}, v[{st+4*q}:{st+4*q+3}] offset:{b + q*32*XR}")
        for p in range(6):
            a(f"ds_write_b128 v{WLW}, v[{st+16+4*p}:{st+19+4*p}] offset:{b + p*WP}")
    def compute(buf):
        b = buf * ST
        def rd(s):
            p = s & 1
            a(f"ds_read_b128 v[{XF+4*p}:{XF+4*p+3}], v{XLR} offset:{b + s*32}")
            for c in range(6):
                r = WF + 24*p + 4*c
                wl = WLR if buf == 0 else 6
                a(f"ds_read_b64_tr_b16 v[{r}:{r+1}], v{wl} offset:{c*WP + s*1024}")
                a(f"ds_read_b64_tr_b16 v[{r+2}:{r+3}], v{wl} offset:{c*WP + s*1024 + 256}")
        rd(0)
        for s in range(4):
            p = s & 1
            if s + 1 < 4:
                rd(s + 1)
                a("s_waitcnt lgkmcnt(13)")
            else:
                a("s_waitcnt lgkmcnt(0)")
            for c in range(6):
                r = WF + 24*p + 4*c
                a(f"v_mfma_f32_32x32x16_bf16 v[{ACC+16*c}:{ACC+16*c+15}], v[{r}:{r+3}], v[{XF+4*p}:{XF+4*p+3}], v[{ACC+16*c}:{ACC+16*c+15}]")
    n = 8
    sets = [STA, STB]
    issue(sets[0]); issue(sets[1])
    a(f"s_waitcnt vmcnt({NL})")
    store(sets[0], 0)
    issue(sets[0])
    a("s_waitcnt lgkmcnt(0)")
    a("s_barrier")
    for c in range(n):
        compute(c & 1)
        if c + 1 < n:
            a(f"s_waitcnt vmcnt({NL if c+2 < n else 0})")
            store(sets[(c+1) & 1], (c+1) & 1)
            if c + 3 < n:
                issue(sets[(c+1) & 1])
            a("s_waitcnt lgkmcnt(0)")
            a("s_barrier")
    a(f"v_and_b32 v{T}, 31, v{L}")
    a(f"v_lshlrev_b32 v{T}, 7, v{T}")
    a("s_lshl_b32 s5, s50, 5")
    a("s_add_u32 s5, s5, s47")
    a("s_lshl_b32 s6, s5, 7")
    a(f"s_add_u32 s6, s6, {WS_ST}")
    sadd64(a, 56, S_WS, "s6")
    for i in range(8):
        a(f"global_load_dwordx4 v[{STA+4*i}:{STA+4*i+3}], v{T}, s[56:57] offset:{16*i}")
    a(f"v_lshrrev_b32 v{T+1}, 5, v{L}")
    a(f"v_lshlrev_b32 v{T+1}, 4, v{T+1}")
    a("s_lshl_b32 s6, s48, 1")
    a(f"v_add_u32 v{T+2}, s6, v{T+1}")
    a("s_mul_i32 s51, s4, 3")
    a("s_lshl_b32 s6, s4, 1")
    a("s_add_u32 s6, s6, 11")
    a("s_cmp_lt_u32 s4, 11")
    a("s_cselect_b32 s51, s51, s6")
    a("s_lshl_b32 s6, s51, 7")
    a(f"s_add_u32 s6, s6, {WS_CS}")
    sadd64(a, 58, S_WS, "s6")
    sadd64(a, 60, 58, 1376*4)
    CS = WF
    a("s_waitcnt vmcnt(0)")
    a(f"v_mov_b32 v{MEAN}, 0")
    a(f"v_mov_b32 v{RSTD}, 0")
    for i in range(16):
        a(f"v_add_f32 v{MEAN}, v{MEAN}, v{STA+2*i}")
        a(f"v_add_f32 v{RSTD}, v{RSTD}, v{STA+2*i+1}")
    a(f"v_mul_f32 v{MEAN}, {f32(1.0/512)}, v{MEAN}")
    a(f"v_mul_f32 v{RSTD}, {f32(1.0/512)}, v{RSTD}")
    a(f"v_fma_f32 v{RSTD}, -v{MEAN}, v{MEAN}, v{RSTD}")
    a(f"v_max_f32 v{RSTD}, 0, v{RSTD}")
    a(f"v_add_f32 v{RSTD}, {f32(1e-5)}, v{RSTD}")
    a(f"v_rsq_f32 v{RSTD}, v{RSTD}")
    a(f"v_and_b32 v{T}, 31, v{L}")
    a(f"v_mul_u32_u24 v{T}, 2752, v{T}")
    a(f"v_lshrrev_b32 v{T+3}, 5, v{L}")
    a(f"v_lshl_add_u32 v{T}, v{T+3}, 3, v{T}")
    a("s_mul_i32 s6, s5, 2752")
    a("s_lshl_b32 s7, s51, 6")
    a("s_add_u32 s6, s6, s7")
    a(f"s_add_u32 s6, s6, {WS_ACT}")
    sadd64(a, 62, S_WS, "s6")
    for tile in range(3):
        if tile == 2:
            a("s_cmp_lt_u32 s49, 3")
            a("s_cbranch_scc1 L_k4_exit")
        va = T+1 if tile < 2 else T+2
        off = tile*128 if tile < 2 else 0
        for g in range(4):
            a(f"global_load_dwordx4 v[{CS+4*g}:{CS+4*g+3}], v{va}, s[58:59] offset:{off+32*g}")
            a(f"global_load_dwordx4 v[{CS+16+4*g}:{CS+19+4*g}], v{va}, s[60:61] offset:{off+32*g}")
        a("s_waitcnt vmcnt(0)")
        G = ACC + 16*tile
        U = ACC + 48 + 16*tile
        E = STA
        for i in range(16):
            a(f"v_fma_f32 v{G+i}, -v{MEAN}, v{CS+i}, v{G+i}")
            a(f"v_fma_f32 v{U+i}, -v{MEAN}, v{CS+16+i}, v{U+i}")
        for i in range(16):
            a(f"v_mul_f32 v{G+i}, v{RSTD}, v{G+i}")
            a(f"v_mul_f32 v{U+i}, v{RSTD}, v{U+i}")
        for i in range(16):
            a(f"v_mul_f32 v{E+i}, {f32(-LOG2E)}, v{G+i}")
        for i in range(16):
            a(f"v_exp_f32 v{E+i}, v{E+i}")
        for i in range(16):
            a(f"v_add_f32 v{E+i}, 1.0, v{E+i}")
        for i in range(16):
            a(f"v_rcp_f32 v{E+i}, v{E+i}")
        for i in range(16):
            a(f"v_mul_f32 v{G+i}, v{G+i}, v{U+i}")
        for i in range(16):
            a(f"v_mul_f32 v{G+i}, v{G+i}, v{E+i}")
        for i in range(8):
            a(f"v_cvt_pk_bf16_f32 v{E+16+i}, v{G+2*i}, v{G+2*i+1}")
        for g in range(4):
            a(f"global_store_dwordx2 v{T}, v[{E+16+2*g}:{E+17+2*g}], s[62:63] offset:{tile*64+16*g}")
    a.label("L_k4_exit")
    a("s_endpgm")
    return name, a.text(), kdesc(name, 256), 2*ST

def main():
    k1 = gen_k1(); k2 = gen_k2(); k3 = gen_k3(); k4 = gen_k4(); k5 = gen_k5()
    launches = [
        (k1[0], 374, 256, GEMM_LDS),
        (k2[0], 256, 1024, 163840),
        (k3[0], 256, 256, GEMM_LDS),
        (k4[0], 256, 256, k4[3]),
        (k5[0], 256, 256, GEMM_LDS),
    ]
    out = []
    for (n, g, b, l) in launches:
        out.append(f"; @launch kernel={n} grid=({g},1,1) block=({b},1,1) lds={l}")
    out.append('.amdgcn_target "amdgcn-amd-amdhsa--gfx950"')
    out.append(".text")
    for k in (k1, k2, k3, k4, k5):
        out.append(k[1])
    out.append('.section .rodata,"a"')
    for k in (k1, k2, k3, k4, k5):
        out.append(k[2])
    path = sys.argv[1] if len(sys.argv) > 1 else f"cdna_kernels/{NAME}.s"
    open(path, "w").write("\n".join(out))
    print("wrote", path)

if __name__ == "__main__":
    main()
```
